```python
import torch

def _softmax(x, axis=-1):
    return torch.softmax(x, dim=axis)
def _gelu(x):
    return torch.nn.functional.gelu(x, approximate="tanh")
def _silu(x):
    return torch.nn.functional.silu(x)
def _sigmoid(x):
    return torch.sigmoid(x)
def _layernorm(x, axis=-1, eps=1e-5):
    m = x.mean(dim=axis, keepdim=True)
    v = x.var(dim=axis, keepdim=True, unbiased=False)
    return (x - m) / torch.sqrt(v + eps)
def _scatter_add(tgt, idx, src, axis=0):
    return tgt.clone().index_add_(axis, idx, src)
def _segment_sum(src, seg, n):
    out = torch.zeros((n,) + src.shape[1:], dtype=src.dtype)
    return out.index_add_(0, seg, src)
def _pad(x, pw):
    flat = tuple(v for pair in reversed(pw) for v in pair)
    return torch.nn.functional.pad(x, flat)

kernel_name = 'standalone__softmax_full_bidir__decode'

def setup_inputs():

    _w = (lambda a: (lambda t: t.to(torch.bfloat16) if t.is_floating_point() else t)(torch.as_tensor(a)))
    B, H, Sq, Skv, Dh = 1, 32, 1, 32768, 192
    return {
        "q": _w((lambda *s: torch.randn(*s, dtype=torch.bfloat16) * 0.8)(B, H, Sq, Dh)),
        "k": _w((lambda *s: torch.randn(*s, dtype=torch.bfloat16) * 0.8)(B, H, Skv, Dh)),
        "v": _w((lambda *s: torch.randn(*s, dtype=torch.bfloat16) * 0.05)(B, H, Skv, Dh)),
    }

def reference(q, k, v):
    scale = q.shape[-1] ** -0.5
    scores = torch.einsum('bhqd,bhkd->bhqk', q, k) * scale
    attn = _softmax(scores, axis=-1)
    return torch.einsum('bhqk,bhkd->bhqd', attn, v)
```

```python
import sys
NAME = "standalone__softmax_full_bidir__decode"
HEADER = open('cdna_kernels/%s.s.ref' % NAME).read().split('; Override')[0]

NW = 16
NSPLIT = 8
KEYS_W = 32768 // NSPLIT // NW
NT = KEYS_W // 16
NG = KEYS_W // 8
NUNIT = 6
NTLOAD = ""
if len(sys.argv) > 1 and sys.argv[1] == 'nt':
    NTLOAD = " nt"

out = []
def e(s): out.append("    " + s)
def lab(s): out.append(s + ":")

class VM:
    def __init__(s): s.q = []
    def issue(s, tag): s.q.append(tag)
    def wait(s, tag):
        idx = max(i for i, t in enumerate(s.q) if t == tag)
        n = len(s.q) - 1 - idx
        e("s_waitcnt vmcnt(%d)" % n)
        s.q = s.q[idx+1:]
vm = VM()

C_SCALE = (192 ** -0.5) * 1.4426950408889634
import struct
def f2u(f): return struct.unpack('<I', struct.pack('<f', f))[0]

V_TID=0; V_OFFK=1; V_OFFV=2; V_T0=3; V_T1=4; V_T2=5; V_T3=6; V_PADDR=7; V_LANE=8; V_M=9
Q0=10
D0=34
D0=36
S0=44
P0=48
B0=56
assert B0 + 12*NUNIT == 128

k1 = NAME + "_kernel"
k2 = "combine_kernel"

out.append(HEADER.rstrip('\n'))
out.append("; @launch kernel=%s grid=(%d,1,1) block=(%d,1,1) lds=%d" % (k1, 32*NSPLIT, 64*NW, 32768))
out.append("; @launch kernel=%s grid=(32,1,1) block=(256,1,1) lds=0" % k2)
out.append('.amdgcn_target "amdgcn-amd-amdhsa--gfx950"')
out.append(".text")
out.append(".globl %s" % k1)
out.append(".p2align 8")
out.append(".type %s,@function" % k1)
lab(k1)
e("s_cmp_ge_u32 s2, %d" % (32*NSPLIT))
e("s_cbranch_scc1 L_end1")
e("s_load_dwordx4 s[4:7], s[0:1], 0")
e("s_load_dwordx2 s[8:9], s[0:1], 16")
e("s_load_dwordx2 s[10:11], s[0:1], 40")
e("v_and_b32 v%d, 63, v0" % V_LANE)
e("v_lshrrev_b32 v%d, 6, v0" % V_T0)
e("s_nop 0")
e("v_readfirstlane_b32 s3, v%d" % V_T0)
e("v_and_b32 v%d, 15, v%d" % (V_T0, V_LANE))
e("v_mul_u32_u24 v%d, 384, v%d" % (V_OFFK, V_T0))
e("v_lshrrev_b32 v%d, 4, v%d" % (V_T1, V_LANE))
e("v_lshlrev_b32 v%d, 4, v%d" % (V_T1, V_T1))
e("v_add_u32 v%d, v%d, v%d" % (V_OFFK, V_OFFK, V_T1))
e("v_lshrrev_b32 v%d, 3, v%d" % (V_T0, V_LANE))
e("v_mul_u32_u24 v%d, 384, v%d" % (V_OFFV, V_T0))
e("v_and_b32 v%d, 7, v%d" % (V_T2, V_LANE))
e("v_lshlrev_b32 v%d, 4, v%d" % (V_T3, V_T2))
e("v_add_u32 v%d, v%d, v%d" % (V_OFFV, V_OFFV, V_T3))
e("s_lshr_b32 s12, s2, 3")
e("s_and_b32 s13, s2, 7")
e("s_mul_i32 s14, s12, 12582912")
e("s_mul_i32 s15, s13, %d" % (NW*KEYS_W*384))
e("s_add_u32 s14, s14, s15")
e("s_mul_i32 s15, s3, %d" % (6144))
e("s_add_u32 s14, s14, s15")
e("s_mul_i32 s15, s12, 384")
e("s_mov_b32 s32, 0xffff"); e("s_mov_b32 s33, 0")
e("s_mov_b32 s34, 0xffff0000"); e("s_mov_b32 s35, 0")
e("s_mov_b32 s36, 0"); e("s_mov_b32 s37, 0xffff")
e("s_mov_b32 s38, 0"); e("s_mov_b32 s39, 0xffff0000")
e("s_waitcnt lgkmcnt(0)")
e("s_mov_b32 s16, s4"); e("s_and_b32 s17, s5, 0xffff"); e("s_mov_b32 s18, 12288"); e("s_mov_b32 s19, 0x20000")
e("s_mov_b32 s20, s6"); e("s_and_b32 s21, s7, 0xffff"); e("s_mov_b32 s22, 402653184"); e("s_mov_b32 s23, 0x20000")
e("s_mov_b32 s24, s8"); e("s_and_b32 s25, s9, 0xffff"); e("s_mov_b32 s26, 402653184"); e("s_mov_b32 s27, 0x20000")
e("s_mov_b32 s28, s10"); e("s_and_b32 s29, s11, 0xffff"); e("s_mov_b32 s30, %d" % (32*NSPLIT*1024)); e("s_mov_b32 s31, 0x20000")
for s in range(6):
    e("buffer_load_dwordx4 v[%d:%d], v%d, s[16:19], s15 offen offset:%d" % (Q0+4*s, Q0+4*s+3, V_T1, s*64))
    vm.issue('q')

def k_issue(t):
    u = (2*t) % NUNIT
    base = B0 + 12*u
    e("s_add_u32 s40, s14, %d" % (t*6144*NW))
    for s in range(6):
        e("buffer_load_dwordx4 v[%d:%d], v%d, s[20:23], s40 offen offset:%d%s" % (base+4*s, base+4*s+3, V_OFFK, s*64, NTLOAD))
        vm.issue(('k', t))
def v_issue(g):
    u = (2*NT + g) % NUNIT
    base = B0 + 12*u
    e("s_add_u32 s41, s14, %d" % ((g>>1)*6144*NW + (g&1)*3072))
    for j in range(3):
        e("buffer_load_dwordx4 v[%d:%d], v%d, s[24:27], s41 offen offset:%d%s" % (base+4*j, base+4*j+3, V_OFFV, j*128, NTLOAD))
        vm.issue(('v', g))

KD = NUNIT // 2
for t in range(KD):
    k_issue(t)
vnext = 0
def cnd(t):
    d = D0 + 4*(t % 2)
    e("v_cndmask_b32 v%d, v%d, v%d, s[%d:%d]" % (S0 + t//4, S0 + t//4, d, 32+2*(t%4), 33+2*(t%4)))
for t in range(NT):
    vm.wait(('k', t))
    u = (2*t) % NUNIT
    base = B0 + 12*u
    d = D0 + 4*(t % 2)
    for s in range(6):
        c = "0" if s == 0 else "v[%d:%d]" % (d, d+3)
        e("v_mfma_f32_16x16x32_bf16 v[%d:%d], v[%d:%d], v[%d:%d], %s" % (d, d+3, Q0+4*s, Q0+4*s+3, base+4*s, base+4*s+3, c))
    if t >= 1:
        cnd(t-1)
    if t + KD < NT:
        k_issue(t + KD)
    else:
        v_issue(vnext); v_issue(vnext+1); vnext += 2
e("s_nop 7")
e("s_nop 3")
cnd(NT-1)
e("v_max_f32 v%d, v%d, v%d" % (V_M, S0, S0+1))
e("v_max3_f32 v%d, v%d, v%d, v%d" % (V_M, V_M, S0+2, S0+3))
def xlane(op, r, tmp):
    for rot in (8, 4, 2, 1):
        e("s_nop 1")
        e("%s_dpp v%d, v%d, v%d row_ror:%d row_mask:0xf bank_mask:0xf" % (op, r, r, r, rot))
    for sw in ("v_permlane16_swap_b32", "v_permlane32_swap_b32"):
        e("v_mov_b32 v%d, v%d" % (tmp, r))
        e("s_nop 1")
        e("%s v%d, v%d" % (sw, tmp, r))
        e("s_nop 1")
        e("%s v%d, v%d, v%d" % (op, r, r, tmp))
xlane("v_max_f32", V_M, V_T0)
e("s_mov_b32 s42, 0x%08x" % f2u(C_SCALE))
e("v_mul_f32 v%d, s42, v%d" % (V_T1, V_M))
for r in range(4):
    e("v_fma_f32 v%d, v%d, s42, -v%d" % (S0+r, S0+r, V_T1))
for r in range(4):
    e("v_exp_f32 v%d, v%d" % (S0+r, S0+r))
e("s_nop 0")
for r in range(4):
    e("v_cvt_pk_bf16_f32 v%d, v%d, 0" % (S0+r, S0+r))
e("v_lshlrev_b32 v%d, 16, v%d" % (V_T2, S0))
e("v_lshlrev_b32 v%d, 16, v%d" % (V_T3, S0+1))
e("v_add_f32 v%d, v%d, v%d" % (V_T2, V_T2, V_T3))
e("v_lshlrev_b32 v%d, 16, v%d" % (V_T3, S0+2))
e("v_add_f32 v%d, v%d, v%d" % (V_T2, V_T2, V_T3))
e("v_lshlrev_b32 v%d, 16, v%d" % (V_T3, S0+3))
e("v_add_f32 v%d, v%d, v%d" % (V_T2, V_T2, V_T3))
xlane("v_add_f32", V_T2, V_T0)
e("v_and_b32 v%d, 7, v%d" % (V_T0, V_LANE))
e("v_lshlrev_b32 v%d, 7, v%d" % (V_T0, V_T0))
e("v_lshrrev_b32 v%d, 3, v%d" % (V_T3, V_LANE))
e("v_lshl_add_u32 v%d, v%d, 2, v%d" % (V_T0, V_T3, V_T0))
e("s_lshl_b32 s43, s3, 10")
e("v_add_u32 v%d, s43, v%d" % (V_T0, V_T0))
for r in range(4):
    e("ds_write_b32 v%d, v%d offset:%d" % (V_T0, S0+r, r*32))
e("v_lshlrev_b32 v%d, 7, v%d" % (V_PADDR, V_T3))
e("v_add_u32 v%d, s43, v%d" % (V_PADDR, V_PADDR))
ACC = Q0
for i in range(24):
    e("v_mov_b32 v%d, 0" % (ACC+i))
e("s_waitcnt lgkmcnt(0)")
e("v_mov_b32 v%d, v%d" % (S0, V_T2))
def p_issue(q4):
    e("ds_read_b128 v[%d:%d], v%d offset:%d" % (P0+4*(q4%2), P0+4*(q4%2)+3, V_PADDR, q4*16))
p_issue(0)
for g in range(NG):
    if g % 4 == 0:
        e("s_waitcnt lgkmcnt(0)")
        if g//4 + 1 < NG//4:
            p_issue(g//4 + 1)
    pl = P0 + 4*((g//4) % 2) + (g % 4)
    e("v_lshlrev_b32 v%d, 16, v%d" % (V_T0, pl))
    vm.wait(('v', g))
    u = (2*NT + g) % NUNIT
    base = B0 + 12*u
    for j in range(3):
        for dw in range(4):
            r = base + 4*j + dw
            a = ACC + 8*j + 2*dw
            e("v_dot2_f32_bf16 v%d, v%d, v%d, v%d" % (a, r, pl, a))
            e("v_dot2_f32_bf16 v%d, v%d, v%d, v%d" % (a+1, r, V_T0, a+1))
    if vnext < NG:
        v_issue(vnext); vnext += 1
e("s_nop 1")
for i in range(24):
    e("v_add_f32_dpp v%d, v%d, v%d row_ror:8 row_mask:0xf bank_mask:0xf" % (ACC+i, ACC+i, ACC+i))
for sw in ("v_permlane16_swap_b32", "v_permlane32_swap_b32"):
    for i in range(24):
        e("v_mov_b32 v%d, v%d" % (B0+i, ACC+i))
    e("s_nop 1")
    for i in range(24):
        e("%s v%d, v%d" % (sw, B0+i, ACC+i))
    e("s_nop 1")
    for i in range(24):
        e("v_add_f32 v%d, v%d, v%d" % (ACC+i, ACC+i, B0+i))
e("v_and_b32 v%d, 7, v%d" % (V_T0, V_LANE))
e("v_lshlrev_b32 v%d, 5, v%d" % (V_T0, V_T0))
e("v_add_u32 v%d, s43, v%d" % (V_T0, V_T0))
e("v_cmp_gt_u32 vcc, 8, v%d" % V_LANE)
e("s_and_saveexec_b64 s[44:45], vcc")
for j in range(3):
    e("ds_write_b128 v%d, v[%d:%d] offset:%d" % (V_T0, ACC+8*j, ACC+8*j+3, 16384 + j*256))
    e("ds_write_b128 v%d, v[%d:%d] offset:%d" % (V_T0, ACC+8*j+4, ACC+8*j+7, 16384 + j*256 + 16))
e("v_mov_b32 v%d, s43" % V_T1)
e("v_mov_b32 v%d, v%d" % (V_M+0, V_M))
e("ds_write_b32 v%d, v%d offset:%d" % (V_T1, V_M, 16384+768))
e("ds_write_b32 v%d, v%d offset:%d" % (V_T1, S0, 16384+772))
e("s_mov_b64 exec, s[44:45]")
e("s_waitcnt lgkmcnt(0)")
e("s_barrier")
e("v_cmp_gt_u32 vcc, 192, v0")
e("s_and_saveexec_b64 s[44:45], vcc")
e("s_cbranch_execz L_end1")
e("v_mov_b32 v%d, 0" % V_T0)
for w in range(NW):
    e("ds_read_b64 v[%d:%d], v%d offset:%d" % (B0+2*w, B0+2*w+1, V_T0, 16384 + w*1024 + 768))
e("v_lshlrev_b32 v%d, 2, v0" % V_T1)
for w in range(NW):
    e("ds_read_b32 v%d, v%d offset:%d" % (Q0+w, V_T1, 16384 + w*1024))
e("s_waitcnt lgkmcnt(0)")
e("v_max_f32 v%d, v%d, v%d" % (V_M, B0, B0+2))
for w in range(2, NW):
    e("v_max_f32 v%d, v%d, v%d" % (V_M, V_M, B0+2*w))
e("v_mul_f32 v%d, s42, v%d" % (V_T2, V_M))
for w in range(NW):
    e("v_fma_f32 v%d, v%d, s42, -v%d" % (B0+2*w, B0+2*w, V_T2))
for w in range(NW):
    e("v_exp_f32 v%d, v%d" % (B0+2*w, B0+2*w))
e("s_nop 0")
e("v_mul_f32 v%d, v%d, v%d" % (V_T3, B0, B0+1))
e("v_mul_f32 v%d, v%d, v%d" % (V_T2, B0, Q0))
for w in range(1, NW):
    e("v_fma_f32 v%d, v%d, v%d, v%d" % (V_T3, B0+2*w, B0+2*w+1, V_T3))
    e("v_fma_f32 v%d, v%d, v%d, v%d" % (V_T2, B0+2*w, Q0+w, V_T2))
e("s_lshl_b32 s40, s2, 10")
e("buffer_store_dword v%d, v%d, s[28:31], s40 offen" % (V_T2, V_T1))
e("v_cmp_eq_u32 vcc, 0, v0")
e("s_and_b64 exec, exec, vcc")
e("v_mov_b32 v%d, v%d" % (V_M+0, V_M))
e("v_mov_b32 v%d, v%d" % (V_M-1, V_M))
e("v_mov_b32 v%d, v%d" % (V_M, V_T3))
e("buffer_store_dwordx2 v[%d:%d], v%d, s[28:31], s40 offen offset:768" % (V_M-1, V_M, V_T1))
lab("L_end1")
e("s_endpgm")

out.append(".globl %s" % k2)
out.append(".p2align 8")
out.append(".type %s,@function" % k2)
lab(k2)
e("s_cmp_ge_u32 s2, 32")
e("s_cbranch_scc1 L_end2")
e("s_load_dwordx2 s[4:5], s[0:1], 24")
e("s_load_dwordx2 s[10:11], s[0:1], 40")
e("v_cmp_gt_u32 vcc, 192, v0")
e("s_and_saveexec_b64 s[44:45], vcc")
e("s_cbranch_execz L_end2")
e("v_lshlrev_b32 v1, 2, v0")
e("v_mov_b32 v2, 0")
e("s_mov_b32 s42, 0x%08x" % f2u(C_SCALE))
e("s_mul_i32 s40, s2, %d" % (NSPLIT*1024))
e("s_waitcnt lgkmcnt(0)")
e("s_mov_b32 s28, s10"); e("s_and_b32 s29, s11, 0xffff"); e("s_mov_b32 s30, %d" % (32*NSPLIT*1024)); e("s_mov_b32 s31, 0x20000")
e("s_mov_b32 s16, s4"); e("s_and_b32 s17, s5, 0xffff"); e("s_mov_b32 s18, 12288"); e("s_mov_b32 s19, 0x20000")
e("s_add_u32 s41, s40, 4096")
for s in range(NSPLIT):
    so = "s40" if s < 4 else "s41"
    e("buffer_load_dword v%d, v1, s[28:31], %s offen offset:%d" % (10+s, so, (s%4)*1024))
    e("buffer_load_dwordx2 v[%d:%d], v2, s[28:31], %s offen offset:%d" % (20+2*s, 21+2*s, so, (s%4)*1024+768))
e("s_waitcnt vmcnt(0)")
e("v_max_f32 v3, v20, v22")
for s in range(2, NSPLIT):
    e("v_max_f32 v3, v3, v%d" % (20+2*s))
e("v_mul_f32 v4, s42, v3")
for s in range(NSPLIT):
    e("v_fma_f32 v%d, v%d, s42, -v4" % (20+2*s, 20+2*s))
for s in range(NSPLIT):
    e("v_exp_f32 v%d, v%d" % (20+2*s, 20+2*s))
e("s_nop 0")
e("v_mul_f32 v5, v20, v21")
e("v_mul_f32 v6, v20, v10")
for s in range(1, NSPLIT):
    e("v_fma_f32 v5, v%d, v%d, v5" % (20+2*s, 21+2*s))
    e("v_fma_f32 v6, v%d, v%d, v6" % (20+2*s, 10+s))
e("v_rcp_f32 v5, v5")
e("s_nop 0")
e("v_mul_f32 v6, v6, v5")
e("v_cvt_pk_bf16_f32 v6, v6, v6")
e("v_lshlrev_b32 v1, 1, v0")
e("s_mul_i32 s41, s2, 384")
e("buffer_store_short v6, v1, s[16:19], s41 offen")
lab("L_end2")
e("s_endpgm")

out.append('.section .rodata,"a"')
for name, nv in ((k1, 128), (k2, 40)):
    out.append(".p2align 6")
    out.append(".amdhsa_kernel %s" % name)
    out.append("  .amdhsa_next_free_vgpr %d" % nv)
    out.append("  .amdhsa_next_free_sgpr 64")
    out.append("  .amdhsa_accum_offset %d" % nv)
    out.append("  .amdhsa_group_segment_fixed_size 0")
    out.append("  .amdhsa_kernarg_size 48")
    out.append("  .amdhsa_user_sgpr_count 2")
    out.append("  .amdhsa_user_sgpr_kernarg_segment_ptr 1")
    out.append("  .amdhsa_system_sgpr_workgroup_id_x 1")
    out.append(".end_amdhsa_kernel")
open('cdna_kernels/%s.s' % NAME, 'w').write("\n".join(out) + "\n")
```
